```python
import torch

def _softmax(x, axis=-1):
    return torch.softmax(x, dim=axis)
def _gelu(x):
    return torch.nn.functional.gelu(x, approximate="tanh")
def _silu(x):
    return torch.nn.functional.silu(x)
def _sigmoid(x):
    return torch.sigmoid(x)
def _layernorm(x, axis=-1, eps=1e-5):
    m = x.mean(dim=axis, keepdim=True)
    v = x.var(dim=axis, keepdim=True, unbiased=False)
    return (x - m) / torch.sqrt(v + eps)
def _scatter_add(tgt, idx, src, axis=0):
    return tgt.clone().index_add_(axis, idx, src)
def _segment_sum(src, seg, n):
    out = torch.zeros((n,) + src.shape[1:], dtype=src.dtype)
    return out.index_add_(0, seg, src)
def _pad(x, pw):
    flat = tuple(v for pair in reversed(pw) for v in pair)
    return torch.nn.functional.pad(x, flat)

kernel_name = 'interleave_layers__spectral_gfnet__mixer_token_mlp__prompt'

def setup_inputs():

    _w = (lambda a: (lambda t: t.to(torch.bfloat16) if t.is_floating_point() else t)(torch.as_tensor(a)))
    def _A_setup():
        B, S, D = 1, 2048, 448
        Df = D // 2 + 1
        return {
            "x": _w((lambda *s: torch.randn(*s, dtype=torch.bfloat16) * 0.05)(B, S, D)),
            "w_r": _w((lambda *s: torch.randn(*s, dtype=torch.bfloat16) * 1.6)(S, Df) * 0.02),
            "w_i": _w((lambda *s: torch.randn(*s, dtype=torch.bfloat16) * 1.6)(S, Df) * 0.02),
        }
    _A_in = _A_setup()

    def _B_setup():
        B, S, D, F = 1, 2048, 448, 1792
        return {
            "x": _w((lambda *s: torch.randn(*s, dtype=torch.bfloat16) * 0.05)(B, S, D)),
            "w1": _w((lambda *s: torch.randn(*s, dtype=torch.bfloat16) * 0.4)(S, F) * (S ** -0.5)),
            "b1": _w((lambda *s: torch.randn(*s, dtype=torch.bfloat16) * 3.2)(F) * 0.02),
            "w2": _w((lambda *s: torch.randn(*s, dtype=torch.bfloat16) * 0.8)(F, S) * (F ** -0.5)),
            "b2": _w((lambda *s: torch.randn(*s, dtype=torch.bfloat16) * 3.2)(S) * 0.02),
        }
    _B_in = _B_setup()

    return {
        "A_x": _A_in["x"],
        "A_w_r": _A_in["w_r"],
        "A_w_i": _A_in["w_i"],
        "B_x": _B_in["x"],
        "B_w1": _B_in["w1"],
        "B_b1": _B_in["b1"],
        "B_w2": _B_in["w2"],
        "B_b2": _B_in["b2"],
    }

def reference(A_x, A_w_r, A_w_i, B_x, B_w1, B_b1, B_w2, B_b2):
    def _A_ref(x, w_r, w_i):
        B, S, D = x.shape
        X = (lambda x, axes=(-2,-1): torch.fft.rfft2(x.float(), dim=axes))(x, axes=(-2, -1))
        W = w_r + 1j * w_i
        X = X * W
        y = (lambda x, s, axes=(-2,-1): torch.fft.irfft2(x, s=s, dim=axes).to(torch.bfloat16))(X, (S, D), axes=(-2, -1))
        return y

    def _B_ref(x, w1, b1, w2, b2):
        B, S, D = x.shape
        h = _layernorm(x, axis=-1)
        u = torch.einsum("bsd,sf->bdf", h, w1) + b1
        u = _gelu(u)
        y = torch.einsum("bdf,fs->bds", u, w2) + b2
        return (lambda x, *d: x.permute(*d))(y, 0, 2, 1)

    x = A_x
    x = x + _A_ref(_layernorm(x, axis=-1), A_w_r, A_w_i)
    x = x + _B_ref(_layernorm(x, axis=-1), B_w1, B_b1, B_w2, B_b2)
    x = x + _A_ref(_layernorm(x, axis=-1), A_w_r, A_w_i)
    x = x + _B_ref(_layernorm(x, axis=-1), B_w1, B_b1, B_w2, B_b2)
    return x
```

```python
from asmlib import *
def gen(pattern, n, rot, nt=""):
    if pattern=="rows":
        vo="""v_lshrrev_b32 v2, 3, v1
    s_mov_b32 s20, 917504
    v_mul_lo_u32 v2, v2, s20
    v_and_b32 v3, 7, v1
    v_lshl_add_u32 v2, v3, 4, v2"""
        base="""s_mul_i32 s21, s26, 229376
    s_lshl_b32 s22, s27, 7
    s_add_u32 s21, s21, s22"""
        step=3584
    elif pattern=="contig":
        vo="v_lshlrev_b32 v2, 4, v1"
        base="""s_lshl_b32 s21, s26, 16
    s_lshl_b32 s22, s27, 18
    s_add_u32 s21, s21, s22"""
        step=1024
    else:
        vo="v_lshlrev_b32 v2, 4, v1"
        base=f"""s_lshl_b32 s21, s2, 2
    s_add_u32 s21, s21, s26
    s_mul_i32 s21, s21, {n*1024}"""
        step=1024
    body=f"""
    s_load_dwordx4 s[4:7], s[0:1], 0
    v_and_b32 v1, 63, v0
    v_readfirstlane_b32 s26, v0
    s_lshr_b32 s26, s26, 6
    s_and_b32 s28, s2, 1
    s_bfe_u32 s29, s2, 0x20001
    s_lshr_b32 s30, s2, 3
    s_mul_i32 s31, s28, 5462
    s_add_u32 s31, s31, 16384
    s_mul_i32 s31, s31, s30
    s_lshr_b32 s31, s31, 16
    s_sub_u32 s40, 4, s28
    s_mul_i32 s40, s40, s31
    s_sub_u32 s40, s30, s40        ; di
    s_mul_i32 s40, s40, {rot}
    s_mul_i32 s41, s28, {rot//2}
    s_add_u32 s40, s40, s41
    s_and_b32 s40, s40, 63
    s_min_u32 s31, s31, 6
    s_mul_i32 s27, s29, 7
    s_add_u32 s27, s27, s31
    {vo}
    {base}
    s_waitcnt lgkmcnt(0)
    s_mov_b32 s8, s4
    s_mov_b32 s9, s5
    s_mov_b32 s10, 0x4000000
    s_mov_b32 s11, 0x00020000
    s_mov_b32 s12, s6
    s_mov_b32 s13, s7
    s_mov_b32 s14, 0x100000
    s_mov_b32 s15, 0x00020000
    s_lshl_b32 s24, s26, 15
    v_mov_b32 v4, 0
"""
    for p in range(2):
        body+=f"""
    s_barrier
    s_memrealtime s[32:33]
    s_waitcnt lgkmcnt(0)
"""
        for i in range(n):
            body+=f"""    s_add_u32 m0, s24, {(i%32)*1024}
    s_add_u32 s23, s40, {i}
    s_and_b32 s23, s23, 63
    s_mul_i32 s23, s23, {step}
    s_add_u32 s23, s23, s21
    buffer_load_dwordx4 v2, s[8:11], s23 offen {nt} lds
"""
            if i>=40: body+=f"    s_waitcnt vmcnt(39)\n"
        body+=f"""    s_memrealtime s[36:37]
    s_waitcnt vmcnt(0)
    s_memrealtime s[34:35]
    s_waitcnt lgkmcnt(0)
    s_sub_u32 s34, s34, s32
    s_sub_u32 s36, s36, s32
    v_writelane_b32 v4, s34, {2*p}
    v_writelane_b32 v4, s36, {2*p+1}
"""
    body+="""
    s_lshl_b32 s3, s2, 2
    s_add_u32 s3, s3, s26
    s_lshl_b32 s3, s3, 8
    v_lshlrev_b32 v1, 2, v1
    buffer_store_dword v4, v1, s[12:15], s3 offen
    s_endpgm
"""
    return kernel_wrap("k_kernel", body, vgpr=80, kernarg=16)
for nt in ("","nt","sc1 nt","sc0 sc1 nt", "sc0 sc1"):
    t=nt.replace(" ","")
    for rot in (0,16):
        build(f"mb20_rows_rot{rot}_{t}", gen("rows", 64, rot, nt))
    for n in (7,28):
        build(f"mb20_distinct_n{n:02d}_{t}", gen("distinct", n, 0, nt))
```

```python
from asmlib import *
def gen(hist, stsc="sc1"):
    H={"none":"",
       "preread":"".join(f"    buffer_load_dwordx4 v[8:11], v2, s[8:11], s22 offen offset:{k*1024}\n" for k in range(4)),
       "presc1":"".join(f"    buffer_store_dwordx4 v[8:11], v2, s[8:11], s22 offen offset:{k*1024} sc1\n" for k in range(4)),
       "preplain":"".join(f"    buffer_store_dwordx4 v[8:11], v2, s[8:11], s22 offen offset:{k*1024}\n" for k in range(4))+"    s_waitcnt vmcnt(0)\n    buffer_wbl2 sc1\n",
       "presc1read":"".join(f"    buffer_store_dwordx4 v[8:11], v2, s[8:11], s22 offen offset:{k*1024} sc1\n" for k in range(4))+"    s_waitcnt vmcnt(0)\n"+"".join(f"    buffer_load_dwordx4 v[12:15], v2, s[8:11], s22 offen offset:{k*1024} sc1\n" for k in range(4)),
      }[hist]
    def bar(n): return f"""
    s_waitcnt vmcnt(0)
    v_mov_b32 v6, {n}
    s_lshl_b32 s23, s2, 6
    v_mov_b32 v7, s23
    s_mov_b64 exec, 1
    buffer_store_dword v6, v7, s[16:19], 0 offen sc1
    s_mov_b64 exec, -1
    s_mov_b32 s29, 0
    s_sleep 40
L_p{n}:
    v_lshlrev_b32 v7, 6, v1
    buffer_load_dword v20, v7, s[16:19], 0 offen sc1
    buffer_load_dword v21, v7, s[16:19], s40 offen sc1
    buffer_load_dword v22, v7, s[16:19], s41 offen sc1
    buffer_load_dword v23, v7, s[16:19], s42 offen sc1
    s_waitcnt vmcnt(0)
    v_min_u32 v20, v20, v21
    v_min_u32 v22, v22, v23
    v_min_u32 v20, v20, v22
    v_cmp_gt_u32 vcc, {n}, v20
    s_add_u32 s29, s29, 1
    s_cmp_ge_u32 s29, 100000
    s_cbranch_scc1 L_g{n}
    s_cbranch_vccnz L_p{n}
L_g{n}:
    s_sleep 60
"""
    body=f"""
    s_load_dwordx4 s[4:7], s[0:1], 0
    s_load_dwordx2 s[16:17], s[0:1], 16
    v_and_b32 v1, 63, v0
    v_lshlrev_b32 v2, 4, v1
    s_waitcnt lgkmcnt(0)
    s_mov_b32 s8, s4
    s_mov_b32 s9, s5
    s_mov_b32 s10, 0x4000000
    s_mov_b32 s11, 0x00020000
    s_mov_b32 s12, s6
    s_mov_b32 s13, s7
    s_mov_b32 s14, 0x100000
    s_mov_b32 s15, 0x00020000
    s_mov_b32 s18, 0x100000
    s_mov_b32 s19, 0x00020000
    s_mov_b32 s40, 4096
    s_mov_b32 s41, 8192
    s_mov_b32 s42, 12288
    v_mov_b32 v4, 0
    s_add_u32 s22, s2, 11
    s_and_b32 s22, s22, 255
    s_lshl_b32 s22, s22, 12
{H}
{bar(1)}
    s_lshl_b32 s22, s2, 12
    s_memtime s[32:33]
    s_waitcnt lgkmcnt(0)
""" + "".join(f"    buffer_store_dwordx4 v[8:11], v2, s[8:11], s22 offen offset:{k*1024} {stsc}\n" for k in range(4)) + f"""
    s_waitcnt vmcnt(0)
    s_memtime s[34:35]
    s_waitcnt lgkmcnt(0)
    s_sub_u32 s34, s34, s32
    v_writelane_b32 v4, s34, 0
{bar(2)}
    s_add_u32 s22, s2, 5
    s_and_b32 s22, s22, 255
    s_lshl_b32 s22, s22, 12
    s_memtime s[32:33]
    s_waitcnt lgkmcnt(0)
""" + "".join(f"    buffer_load_dwordx4 v[{8+4*k}:{11+4*k}], v2, s[8:11], s22 offen offset:{k*1024} sc1\n" for k in range(4)) + """
    s_waitcnt vmcnt(0)
    s_memtime s[34:35]
    s_waitcnt lgkmcnt(0)
    s_sub_u32 s34, s34, s32
    v_writelane_b32 v4, s34, 1
    s_lshl_b32 s3, s2, 8
    v_lshlrev_b32 v1, 2, v1
    buffer_store_dword v4, v1, s[12:15], s3 offen
    s_endpgm
"""
    return kernel_wrap("k_kernel", body, vgpr=32, kernarg=24)
for h in ("none","preread","presc1","preplain","presc1read"):
    for st in ("sc1","sc0 sc1"):
        build(f"mb22_{h}_{st.replace(' ','')}", gen(h,st))
```
